```python
import torch

def _softmax(x, axis=-1):
    return torch.softmax(x, dim=axis)

def _gelu(x):
    return torch.nn.functional.gelu(x, approximate='tanh')

def _silu(x):
    return torch.nn.functional.silu(x)

def _sigmoid(x):
    return torch.sigmoid(x)

def _layernorm(x, axis=-1, eps=1e-05):
    m = x.mean(dim=axis, keepdim=True)
    v = x.var(dim=axis, keepdim=True, unbiased=False)
    return (x - m) / torch.sqrt(v + eps)

def _scatter_add(tgt, idx, src, axis=0):
    return tgt.clone().index_add_(axis, idx, src)

def _segment_sum(src, seg, n):
    out = torch.zeros((n,) + src.shape[1:], dtype=src.dtype)
    return out.index_add_(0, seg, src)

def _pad(x, pw):
    flat = tuple((v for pair in reversed(pw) for v in pair))
    return torch.nn.functional.pad(x, flat)
kernel_name = 'standalone__tree_speculative_verify_tree_attention_over_candidate_token_tree__sampling'

def setup_inputs():

    _w = lambda a: (lambda t: t.to(torch.bfloat16) if t.is_floating_point() else t)(torch.as_tensor(a))
    B, Hq, Hkv, T, C, D = (16, 32, 8, 32, 4096, 128)
    tree_mask = torch.zeros((B, T, T), dtype=float)
    for b in range(B):
        parent = torch.zeros(T, dtype=torch.int64)
        for i in range(1, T):
            parent[i] = int(torch.randint(0, i, (1,)).item())
        for i in range(T):
            j = i
            tree_mask[b, i, j] = 1.0
            while j > 0:
                j = parent[j]
                tree_mask[b, i, j] = 1.0
    return {'q': _w((lambda *s: torch.randn(*s, dtype=torch.bfloat16) * 0.8)(B, Hq, T, D)), 'k_cache': _w((lambda *s: torch.randn(*s, dtype=torch.bfloat16) * 0.8)(B, Hkv, C, D)), 'v_cache': _w((lambda *s: torch.randn(*s, dtype=torch.bfloat16) * 0.05)(B, Hkv, C, D)), 'k_tree': _w((lambda *s: torch.randn(*s, dtype=torch.bfloat16) * 0.8)(B, Hkv, T, D)), 'v_tree': _w((lambda *s: torch.randn(*s, dtype=torch.bfloat16) * 0.05)(B, Hkv, T, D)), 'tree_mask': _w(tree_mask)}

def reference(q, k_cache, v_cache, k_tree, v_tree, tree_mask):
    B, Hq, T, D = q.shape
    Hkv, C = (k_cache.shape[1], k_cache.shape[2])
    rep = Hq // Hkv
    kc = (lambda x, n, axis: torch.repeat_interleave(x, n, dim=axis))(k_cache, rep, axis=1)
    vc = (lambda x, n, axis: torch.repeat_interleave(x, n, dim=axis))(v_cache, rep, axis=1)
    kt = (lambda x, n, axis: torch.repeat_interleave(x, n, dim=axis))(k_tree, rep, axis=1)
    vt = (lambda x, n, axis: torch.repeat_interleave(x, n, dim=axis))(v_tree, rep, axis=1)
    k = torch.concatenate([kc, kt], axis=2)
    v = torch.concatenate([vc, vt], axis=2)
    scale = D ** (-0.5)
    scores = torch.einsum('bhqd,bhkd->bhqk', q, k) * scale
    ctx_mask = torch.ones((B, 1, T, C), dtype=scores.dtype)
    tm = tree_mask[:, None, :, :].clone()
    full_mask = torch.concatenate([ctx_mask, tm], axis=-1)
    scores = scores + (1.0 - full_mask) * -1000000000.0
    p = _softmax(scores, axis=-1)
    return torch.einsum('bhqk,bhkd->bhqd', p, v)
```

```python
import sys, subprocess, struct, math
import hazard
NAME='standalone__tree_speculative_verify_tree_attention_over_candidate_token_tree__sampling'
def f2u(x): return struct.unpack('<I',struct.pack('<f',x))[0]
import os
_ref='cdna_kernels/'+NAME+'.s.ref'
HEADER=open(_ref).read().split('\n') if os.path.exists(_ref) else []
HDR=[l for l in HEADER if l.startswith(';') and '@launch' not in l and 'Override launch' not in l and 'grid=ceil' not in l]

T0,T1,T2,T3,T4,T5,T6=1,2,3,4,5,6,7
KA=8; VA=16; DK=20; DV=24; M=25; NMC=26; L=27; SA=28; SB=29; OFFQ=30; L16=31
O=32; S=96; BIAS=128; P=160; E=176
NV=192
KF=0; Q=64; NA=96
sW=22; sP=23; sROLE=24; sT=25; sT2=26; sT3=27
SRDK=28; SRDV=32; SRDA=36; SRDW=40; SRDF=44; SRDG=48
sI=52; sN=53; sG=54; sLD=55; sDELTA=56; sC=57; sTHR=58; sRD=59; sQOFF=60; sWS=61; sM0K=62
def v(i,n=1): return f'v{i}' if n==1 else f'v[{i}:{i+n-1}]'
def a(i,n=1): return f'a{i}' if n==1 else f'a[{i}:{i+n-1}]'
def s(i,n=1): return f's{i}' if n==1 else f's[{i}:{i+n-1}]'
SCALE=128**-0.5
CEXP=SCALE*math.log2(math.e)

def interleave(ms, fill, start=0):
    out=[]
    for i,m in enumerate(ms):
        out.append(m)
        if i<len(fill): out+=fill[i]
    for f in fill[len(ms):]: out+=f
    return out
def spread(items, n, costs=None, first=0):
    if costs is None: costs=[8 if x.startswith('v_exp') else 4 for x in items]
    tot=sum(costs); g=[[] for _ in range(n)]; acc=0; k=n-first
    for it,c in zip(items,costs):
        idx=min(k-1,int((acc+c/2)*k/tot)); g[first+idx].append(it); acc+=c
    return g

def sm_block(blk):
    sb=S+16*blk; pb=P+8*blk
    o=[]
    seq=[]
    for j in range(16): seq.append(('f',j))
    fm=[f'v_fma_f32 {v(E+j)}, {v(sb+j)}, {s(sC)}, {v(NMC)}' for j in range(16)]
    ex=[f'v_exp_f32 {v(E+j)}, {v(E+j)}' for j in range(16)]
    o+=fm[0:2]
    for j in range(16):
        o.append(ex[j])
        if j+2<16: o.append(fm[j+2])
        if j>=2 and j%2==0:
            k=j-2
            o.append(f'v_cvt_pk_bf16_f32 {v(pb+k//2)}, {v(E+k)}, {v(E+k+1)}')
            if k==0: o.append(f'v_add_f32 {v(SA)}, {v(E)}, {v(E+1)}')
            elif k==2: o.append(f'v_add_f32 {v(SB)}, {v(E+2)}, {v(E+3)}')
            else:
                o.append(f'v_add_f32 {v(SA)}, {v(SA)}, {v(E+k)}')
                o.append(f'v_add_f32 {v(SB)}, {v(SB)}, {v(E+k+1)}')
    o.append(f'v_add_f32 {v(SA)}, {v(SA)}, {v(E+14)}')
    o.append(f'v_cvt_pk_bf16_f32 {v(pb+7)}, {v(E+14)}, {v(E+15)}')
    o.append(f'v_add_f32 {v(SB)}, {v(SB)}, {v(E+15)}')
    o.append(f'v_add_f32 {v(SA)}, {v(SA)}, {v(SB)}')
    return o

def rare_block(blk, ret):
    sb=S+16*blk
    o=[f'L_rare{blk}:']
    o.append('s_nop 7'); o.append('s_nop 7')
    o.append(f'v_max3_f32 {v(T0)}, {v(sb)}, {v(sb+1)}, {v(sb+2)}')
    for j in range(3,15,2): o.append(f'v_max3_f32 {v(T0)}, {v(T0)}, {v(sb+j)}, {v(sb+j+1)}')
    o.append(f'v_max3_f32 {v(T0)}, {v(T0)}, {v(sb+15)}, {v(M)}')
    o.append(f'v_mov_b32 {v(T1)}, {v(T0)}')
    o.append('s_nop 1')
    o.append(f'v_permlane32_swap_b32 {v(T0)}, {v(T1)}')
    o.append('s_nop 1')
    o.append(f'v_max_f32 {v(T0)}, {v(T0)}, {v(T1)}')
    o.append(f'v_sub_f32 {v(T1)}, {v(M)}, {v(T0)}')
    o.append(f'v_mul_f32 {v(T1)}, {s(sC)}, {v(T1)}')
    o.append(f'v_exp_f32 {v(T1)}, {v(T1)}')
    o.append(f'v_mov_b32 {v(M)}, {v(T0)}')
    o.append(f'v_mul_f32 {v(NMC)}, {s(sC)}, {v(T0)}')
    o.append(f'v_sub_f32 {v(NMC)}, 0, {v(NMC)}')
    o.append(f'v_mul_f32 {v(L)}, {v(L)}, {v(T1)}')
    for j in range(64): o.append(f'v_mul_f32 {v(O+j)}, {v(O+j)}, {v(T1)}')
    o+=sm_block(blk)
    o.append(f's_branch {ret}')
    return o

def dma_group(srdk, srdv, nt):
    f=' nt' if nt else ''
    o=[]
    o.append(f's_mov_b32 m0, {s(sLD)}')
    o.append(f's_add_u32 {s(sT)}, {s(sLD)}, 16384')
    for p in range(4): o.append(f'buffer_load_dwordx4 {v(DK+p)}, {s(srdk,4)}, {s(sG)} offen offset:{p*1024}{f} lds')
    o.append(f's_mov_b32 m0, {s(sT)}')
    o.append(f's_add_u32 {s(sLD)}, {s(sLD)}, 32768')
    for p in range(4): o.append(f'buffer_load_dwordx4 {v(DV)}, {s(srdv,4)}, {s(sG)} offen offset:{p*1024}{f} lds')
    o.append(f's_and_b32 {s(sLD)}, {s(sLD)}, 0x1ffff')
    return o

def kread(blk,st): return f'ds_read_b128 {a(KF+32*blk+4*st,4)}, {v(KA+st)} offset:{blk*8192}'
def vread(ks,db,t):
    r=KF+32*(ks>>1)+4*((ks&1)*4+db)+2*t
    return f'ds_read_b64_tr_b16 {a(r,2)}, {v(VA+db)} offset:{16384+(16*ks+8*t)*256}'
def qk(blk,st):
    c=v(BIAS+16*blk,16) if st==0 else v(S+16*blk,16)
    return f'v_mfma_f32_32x32x16_bf16 {v(S+16*blk,16)}, {a(KF+32*blk+4*st,4)}, {a(Q+4*st,4)}, {c}'
def pv(ks,db):
    r=KF+32*(ks>>1)+4*((ks&1)*4+db)
    return f'v_mfma_f32_32x32x16_bf16 {v(O+16*db,16)}, {a(r,4)}, {v(P+4*ks,4)}, {v(O+16*db,16)}'

def gen(nh=30, nt=True, mapping=0, kname=None, stamp=False):
    kname=kname or NAME+'_kernel'
    o=[]; A=o.append
    A(f'{kname}:')
    A('s_cmp_ge_u32 s2, 256'); A('s_cbranch_scc1 L_done')
    A('s_load_dwordx4 s[4:7], s[0:1], 0'); A('s_load_dwordx4 s[8:11], s[0:1], 16'); A('s_load_dwordx4 s[12:15], s[0:1], 32')
    A('s_load_dwordx4 s[16:19], s[0:1], 48'); A('s_load_dwordx2 s[20:21], s[0:1], 64')
    if stamp: A('s_memrealtime s[70:71]')
    A(f'v_lshrrev_b32 {v(T0)}, 6, v0'); A(f'v_and_b32 v0, 63, v0')
    A(f'v_readfirstlane_b32 {s(sW)}, {v(T0)}')
    if mapping==0:
        A(f's_and_b32 {s(sT)}, s2, 7'); A(f's_lshr_b32 {s(sT2)}, s2, 3'); A(f's_lshl_b32 {s(sT)}, {s(sT)}, 5'); A(f's_add_u32 {s(sT)}, {s(sT)}, {s(sT2)}')
        A(f's_lshr_b32 {s(sP)}, {s(sT)}, 1'); A(f's_and_b32 {s(sROLE)}, {s(sT)}, 1')
    elif mapping==1:
        A(f's_lshr_b32 {s(sP)}, s2, 1'); A(f's_and_b32 {s(sROLE)}, s2, 1')
    A(f'v_and_b32 {v(T1)}, 31, v0'); A(f'v_lshrrev_b32 {v(T2)}, 5, v0'); A(f'v_and_b32 {v(T3)}, 15, v0'); A(f'v_lshrrev_b32 {v(T4)}, 4, v0')
    A(f'v_lshlrev_b32 {v(L16)}, 4, v0')
    A(f'v_lshlrev_b32 {v(OFFQ)}, 8, {v(T1)}'); A(f'v_lshl_add_u32 {v(OFFQ)}, {v(T2)}, 4, {v(OFFQ)}')
    A(f'v_xor_b32 {v(T5)}, {v(T3)}, {v(T4)}')
    for p in range(4):
        A(f'v_xor_b32 {v(T6)}, {4*p}, {v(T5)}'); A(f'v_lshlrev_b32 {v(T6)}, 4, {v(T6)}'); A(f'v_lshl_add_u32 {v(DK+p)}, {v(T4)}, 8, {v(T6)}')
    A(f'v_lshlrev_b32 {v(T6)}, 2, {v(T4)}'); A(f'v_xor_b32 {v(T6)}, {v(T3)}, {v(T6)}'); A(f'v_lshlrev_b32 {v(T6)}, 4, {v(T6)}'); A(f'v_lshl_add_u32 {v(DV)}, {v(T4)}, 8, {v(T6)}')
    A('s_waitcnt lgkmcnt(0)')
    A(f's_mov_b32 {s(SRDA)}, s4'); A(f's_mov_b32 {s(SRDA+1)}, s5'); A(f's_mov_b32 {s(SRDA+2)}, 0x400000'); A(f's_mov_b32 {s(SRDA+3)}, 0x20000')
    A(f's_lshl_b32 {s(sQOFF)}, {s(sP)}, 2'); A(f's_add_u32 {s(sQOFF)}, {s(sQOFF)}, {s(sW)}'); A(f's_lshl_b32 {s(sQOFF)}, {s(sQOFF)}, 13')
    A(f's_lshl_b32 {s(sT)}, {s(sP)}, 20'); A(f's_mul_i32 {s(sT2)}, {s(sROLE)}, {nh*16384}'); A(f's_add_u32 {s(sT)}, {s(sT)}, {s(sT2)}')
    A(f's_add_u32 {s(SRDK)}, s6, {s(sT)}'); A(f's_addc_u32 {s(SRDK+1)}, s7, 0')
    A(f's_add_u32 {s(SRDV)}, s8, {s(sT)}'); A(f's_addc_u32 {s(SRDV+1)}, s9, 0')
    A(f's_cmp_eq_u32 {s(sROLE)}, 0')
    A(f's_cselect_b32 {s(sN)}, {nh}, {64-nh}')
    A(f's_lshl_b32 {s(SRDK+2)}, {s(sN)}, 14'); A(f's_mov_b32 {s(SRDV+2)}, {s(SRDK+2)}')
    A(f's_add_u32 {s(sN)}, {s(sN)}, {s(sROLE)}')
    A(f's_mov_b32 {s(SRDK+3)}, 0x20000'); A(f's_mov_b32 {s(SRDV+3)}, 0x20000')
    A(f's_lshl_b32 {s(sG)}, {s(sW)}, 12'); A(f's_mov_b32 {s(sLD)}, {s(sG)}')
    for st in range(8): A(f'buffer_load_dwordx4 {a(Q+4*st,4)}, {v(OFFQ)}, {s(SRDA,4)}, {s(sQOFF)} offen offset:{st*32}')
    A(f's_cmp_eq_u32 {s(sROLE)}, 0'); A('s_cbranch_scc1 L_pro_helper')
    A(f's_mov_b32 {s(SRDW)}, s14'); A(f's_mov_b32 {s(SRDW+1)}, s15'); A(f's_mov_b32 {s(SRDW+2)}, 32768'); A(f's_mov_b32 {s(SRDW+3)}, 0x20000')
    A(f's_lshr_b32 {s(sT)}, {s(sP)}, 3'); A(f's_lshl_b32 {s(sT)}, {s(sT)}, 11')
    A(f'v_lshlrev_b32 {v(T5)}, 6, {v(T1)}'); A(f'v_lshl_add_u32 {v(T5)}, {v(T2)}, 3, {v(T5)}')
    for g in range(4): A(f'buffer_load_dwordx2 {v(E+2*g,2)}, {v(T5)}, {s(SRDW,4)}, {s(sT)} offen offset:{g*16}')
    A(f's_lshl_b32 {s(sT)}, {s(sP)}, 13')
    A(f's_add_u32 {s(SRDF)}, s10, {s(sT)}'); A(f's_addc_u32 {s(SRDF+1)}, s11, 0'); A(f's_mov_b32 {s(SRDF+2)}, 8192'); A(f's_mov_b32 {s(SRDF+3)}, 0x20000')
    A(f's_add_u32 {s(SRDG)}, s12, {s(sT)}'); A(f's_addc_u32 {s(SRDG+1)}, s13, 0'); A(f's_mov_b32 {s(SRDG+2)}, 8192'); A(f's_mov_b32 {s(SRDG+3)}, 0x20000')
    o+=dma_group(SRDF,SRDG,False)
    for t in range(2):
        o+=dma_group(SRDK,SRDV,nt); A(f's_add_u32 {s(sG)}, {s(sG)}, 16384')
    A(f's_mov_b32 {s(sT)}, {hex(f2u(-1e9/SCALE))}')
    for j in range(16): A(f'v_mov_b32 {v(BIAS+16+j)}, {hex(f2u(-1e30))}')
    A('s_waitcnt vmcnt(24)')
    for g in range(4):
        for d in range(2):
            r=BIAS+4*g+2*d
            A(f'v_lshlrev_b32 {v(r)}, 16, {v(E+2*g+d)}'); A(f'v_and_b32 {v(r+1)}, 0xffff0000, {v(E+2*g+d)}')
    for j in range(16):
        A(f'v_sub_f32 {v(BIAS+j)}, 1.0, {v(BIAS+j)}');
    for j in range(16):
        A(f'v_mul_f32 {v(BIAS+j)}, {s(sT)}, {v(BIAS+j)}')
    A('s_branch L_pro_common')
    A('L_pro_helper:')
    for t in range(3):
        o+=dma_group(SRDK,SRDV,nt); A(f's_add_u32 {s(sG)}, {s(sG)}, 16384')
    for j in range(32): A(f'v_mov_b32 {v(BIAS+j)}, 0')
    A('L_pro_common:')
    A(f'v_and_b32 {v(T5)}, 15, {v(T1)}'); A(f'v_xor_b32 {v(T5)}, {v(T5)}, {v(T2)}')
    for st in range(8):
        A(f'v_xor_b32 {v(T6)}, {2*st}, {v(T5)}'); A(f'v_lshlrev_b32 {v(T6)}, 4, {v(T6)}'); A(f'v_lshl_add_u32 {v(KA+st)}, {v(T1)}, 8, {v(T6)}')
    A(f'v_lshrrev_b32 {v(T5)}, 2, {v(T3)}')
    A(f'v_lshl_add_u32 {v(T6)}, {v(T2)}, 2, {v(T5)}')
    A(f'v_lshlrev_b32 {v(T6)}, 8, {v(T6)}')
    A(f'v_and_b32 {v(T0)}, 1, {v(T4)}'); A(f'v_lshl_add_u32 {v(T6)}, {v(T0)}, 5, {v(T6)}')
    A(f'v_and_b32 {v(T0)}, 3, v0'); A(f'v_lshl_add_u32 {v(T6)}, {v(T0)}, 3, {v(T6)}')
    for db in range(4):
        A(f'v_xor_b32 {v(T0)}, {db}, {v(T5)}'); A(f'v_lshl_add_u32 {v(VA+db)}, {v(T0)}, 6, {v(T6)}')
        A(f'v_subrev_u32 {v(VA+db)}, 32768, {v(VA+db)}')
    for j in range(64): A(f'v_mov_b32 {v(O+j)}, 0')
    for j in range(8): A(f'v_mov_b32 {v(P+8+j)}, 0')
    for j in range(32): A(f'v_accvgpr_write_b32 {a(KF+32+j)}, 0')
    A(f'v_mov_b32 {v(M)}, 0xff800000'); A(f'v_mov_b32 {v(NMC)}, 0x7f800000'); A(f'v_mov_b32 {v(L)}, 0')
    A(f's_mov_b32 {s(sC)}, {hex(f2u(CEXP))}'); A(f's_mov_b32 {s(sTHR)}, {hex(f2u(4096.0))}')
    A(f's_mov_b32 {s(sI)}, 0'); A(f's_mov_b32 {s(sDELTA)}, 32768'); A(f's_mov_b32 {s(sRD)}, 0')
    A('.p2align 6')
    A('L_loop:')
    A('s_waitcnt vmcnt(16) lgkmcnt(0)'); A('s_barrier')
    for st in range(8): A(kread(0,st))
    dma=dma_group(SRDK,SRDV,nt)+[f's_add_u32 {s(sG)}, {s(sG)}, 16384']
    msA=[pv(2+(j>>2),j&3) for j in range(8)]
    va=[f'v_add_u32 {v(VA+db)}, {s(sDELTA)}, {v(VA+db)}' for db in range(4)]
    fillA=[[] for _ in range(8)]
    dg=[dma[0:4],dma[4:6],dma[6:10],dma[10:12],dma[12:]]
    for j in range(8):
        if j>=1: fillA[j].append(kread(1,j-1))
        if j<len(dg): fillA[j]+=dg[j]
        if j>=4: fillA[j].append(va[j-4])
    o+=interleave(msA,fillA)
    A(f's_add_u32 {s(sT)}, {s(sRD)}, 32768'); A(f's_and_b32 {s(sT)}, {s(sT)}, 0x1ffff')
    A(f's_sub_u32 {s(sDELTA)}, {s(sT)}, {s(sRD)}'); A(f's_mov_b32 {s(sRD)}, {s(sT)}')
    A('s_waitcnt lgkmcnt(7)')
    msB=[qk(0,st) for st in range(8)]
    fillB=[[] for _ in range(8)]
    fillB[0].append(kread(1,7))
    for j in range(1,8):
        i=j-1; fillB[j]+=[vread(i>>2,i&3,0),vread(i>>2,i&3,1)]
        fillB[j].append(f'v_add_u32 {v(KA+i)}, {s(sDELTA)}, {v(KA+i)}')
    o+=interleave(msB,fillB)
    A('s_waitcnt lgkmcnt(14)')
    msC=[qk(1,st) for st in range(8)]
    sm0=spread(sm_block(0),8,first=2)
    fillC=[[] for _ in range(8)]
    fillC[0]+=[vread(1,3,0),vread(1,3,1),f'v_add_u32 {v(KA+7)}, {s(sDELTA)}, {v(KA+7)}','s_nop 2']
    for j in range(1,8):
        i=j-1; fillC[j]+=[vread(2+(i>>2),i&3,0),vread(2+(i>>2),i&3,1)]
        fillC[j]+=sm0[j]
    o+=interleave(msC,fillC)
    A(f'v_cmp_ngt_f32 vcc, {s(sTHR)}, {v(SA)}')
    A('s_cbranch_vccnz L_rare0')
    A('L_ret0:')
    A(f'v_add_f32 {v(L)}, {v(L)}, {v(SA)}')
    A('s_waitcnt lgkmcnt(14)')
    msD=[pv(j>>2,j&3) for j in range(8)]
    sm1=spread(sm_block(1),8,first=1)
    fillD=[[] for _ in range(8)]
    fillD[0]+=[vread(3,3,0),vread(3,3,1),'s_nop 3']
    for j in range(1,8): fillD[j]+=sm1[j]
    o+=interleave(msD,fillD)
    A(f'v_cmp_ngt_f32 vcc, {s(sTHR)}, {v(SA)}')
    A('s_cbranch_vccnz L_rare1')
    A('L_ret1:')
    A(f'v_add_f32 {v(L)}, {v(L)}, {v(SA)}')
    A(f's_cmp_lg_u32 {s(sI)}, 0'); A('s_cbranch_scc1 L_nozero')
    for j in range(32): A(f'v_mov_b32 {v(BIAS+j)}, 0')
    A('L_nozero:')
    A(f's_add_u32 {s(sI)}, {s(sI)}, 1'); A(f's_cmp_lt_u32 {s(sI)}, {s(sN)}'); A('s_cbranch_scc1 L_loop')
    A('s_waitcnt lgkmcnt(0)')
    o+=msA
    A(f'v_mov_b32 {v(T0)}, {v(L)}'); A('s_nop 1'); A(f'v_permlane32_swap_b32 {v(L)}, {v(T0)}'); A('s_nop 1'); A(f'v_add_f32 {v(L)}, {v(L)}, {v(T0)}')
    A(f's_mov_b32 {s(SRDW)}, s20'); A(f's_mov_b32 {s(SRDW+1)}, s21'); A(f's_mov_b32 {s(SRDW+2)}, {128*69632}'); A(f's_mov_b32 {s(SRDW+3)}, 0x20000')
    A(f's_mov_b32 {s(SRDF)}, s18'); A(f's_mov_b32 {s(SRDF+1)}, s19'); A(f's_mov_b32 {s(SRDF+2)}, 256'); A(f's_mov_b32 {s(SRDF+3)}, 0x20000')
    A(f's_mul_i32 {s(sWS)}, {s(sP)}, 69632'); A(f's_mul_i32 {s(sT)}, {s(sW)}, 17408'); A(f's_add_u32 {s(sWS)}, {s(sWS)}, {s(sT)}')
    A(f's_lshr_b32 {s(sT2)}, {s(sP)}, 1'); A(f's_lshl_b32 {s(sT2)}, {s(sT2)}, 2')
    A(f's_and_b32 {s(sT3)}, {s(sP)}, 1'); A(f's_lshl_b32 {s(sT3)}, 1, {s(sT3)}')
    A(f'v_lshrrev_b32 {v(T2)}, 1, {v(L16)}')
    A(f's_cmp_eq_u32 {s(sROLE)}, 0'); A('s_cbranch_scc0 L_owner')
    A(f'v_mov_b32 {v(E)}, {v(M)}'); A(f'v_mov_b32 {v(E+1)}, {v(L)}')
    for j in range(16):
        if j%4==0 and j: A(f's_add_u32 {s(sWS)}, {s(sWS)}, 4096')
        A(f'buffer_store_dwordx4 {v(O+4*j,4)}, {v(L16)}, {s(SRDW,4)}, {s(sWS)} offen offset:{(j%4)*1024} sc1')
    A(f's_add_u32 {s(sWS)}, {s(sWS)}, 4096')
    A(f'buffer_store_dwordx2 {v(E,2)}, {v(T2)}, {s(SRDW,4)}, {s(sWS)} offen sc1')
    A('s_waitcnt vmcnt(0)'); A('s_barrier')
    A(f's_cmp_eq_u32 {s(sW)}, 0'); A('s_cbranch_scc0 L_fin')
    A(f'v_mov_b32 {v(T0)}, {s(sT3)}'); A('s_mov_b64 exec, 1')
    A(f'buffer_atomic_or {v(T0)}, off, {s(SRDF,4)}, {s(sT2)}')
    A('s_branch L_fin')
    A('L_owner:')
    A(f's_cmp_eq_u32 {s(sW)}, 0'); A('s_cbranch_scc0 L_polled')
    A('L_poll:')
    A(f'buffer_load_dword {v(T0)}, off, {s(SRDF,4)}, {s(sT2)} sc1')
    A('s_waitcnt vmcnt(0)')
    A(f'v_readfirstlane_b32 {s(sT)}, {v(T0)}')
    A('s_nop 1')
    A(f's_and_b32 {s(sT)}, {s(sT)}, {s(sT3)}')
    A('s_cbranch_scc1 L_polled')
    A('s_sleep 2'); A('s_branch L_poll')
    A('L_polled:')
    A('s_barrier')
    A(f's_add_u32 {s(sT)}, {s(sWS)}, 16384')
    A(f'buffer_load_dwordx2 {v(E,2)}, {v(T2)}, {s(SRDW,4)}, {s(sT)} offen sc1')
    for j in range(16):
        if j%4==0 and j: A(f's_add_u32 {s(sWS)}, {s(sWS)}, 4096')
        A(f'buffer_load_dwordx4 {v(S+4*j,4)}, {v(L16)}, {s(SRDW,4)}, {s(sWS)} offen offset:{(j%4)*1024} sc1')
    A(f's_mov_b32 {s(SRDA)}, s16'); A(f's_mov_b32 {s(SRDA+1)}, s17')
    A('s_waitcnt vmcnt(16)')
    A(f'v_max_f32 {v(T0)}, {v(M)}, {v(E)}')
    A(f'v_sub_f32 {v(T1)}, {v(M)}, {v(T0)}'); A(f'v_sub_f32 {v(T3)}, {v(E)}, {v(T0)}')
    A(f'v_mul_f32 {v(T1)}, {s(sC)}, {v(T1)}'); A(f'v_mul_f32 {v(T3)}, {s(sC)}, {v(T3)}')
    A(f'v_exp_f32 {v(T1)}, {v(T1)}'); A(f'v_exp_f32 {v(T3)}, {v(T3)}')
    A('s_nop 0')
    A(f'v_mul_f32 {v(T4)}, {v(T1)}, {v(L)}'); A(f'v_fma_f32 {v(T4)}, {v(T3)}, {v(E+1)}, {v(T4)}')
    A(f'v_rcp_f32 {v(T4)}, {v(T4)}'); A('s_nop 0')
    A(f'v_mul_f32 {v(T1)}, {v(T1)}, {v(T4)}'); A(f'v_mul_f32 {v(T3)}, {v(T3)}, {v(T4)}')
    for j in range(64): A(f'v_mul_f32 {v(O+j)}, {v(O+j)}, {v(T1)}')
    for k in range(0,16,2):
        A(f's_waitcnt vmcnt({14-k+k//2})')
        for j in range(8): A(f'v_fma_f32 {v(O+4*k+j)}, {v(S+4*k+j)}, {v(T3)}, {v(O+4*k+j)}')
        e=E+4*((k//2)&3)
        for j in range(4): A(f'v_cvt_pk_bf16_f32 {v(e+j)}, {v(O+4*k+2*j)}, {v(O+4*k+2*j+1)}')
        A('s_nop 1')
        A(f'v_permlane32_swap_b32 {v(e)}, {v(e+2)}'); A(f'v_permlane32_swap_b32 {v(e+1)}, {v(e+3)}')
        A(f'buffer_store_dwordx4 {v(e,4)}, {v(OFFQ)}, {s(SRDA,4)}, {s(sQOFF)} offen offset:{16*k}')
    A('L_fin:')
    if stamp:
        A('s_waitcnt vmcnt(0)')
        A('s_memrealtime s[72:73]'); A('s_getreg_b32 s74, hwreg(HW_REG_XCC_ID)'); A('s_waitcnt lgkmcnt(0)')
        A(f's_mov_b32 {s(SRDF+2)}, 0x100000')
        A(f's_lshl_b32 {s(sT)}, s2, 2'); A(f's_add_u32 {s(sT)}, {s(sT)}, {s(sW)}'); A(f's_lshl_b32 {s(sT)}, {s(sT)}, 4'); A(f's_add_u32 {s(sT)}, {s(sT)}, 4096')
        A('s_mov_b64 exec, 1')
        A(f'v_mov_b32 v4, s70'); A('v_mov_b32 v5, s72'); A('v_mov_b32 v6, s74'); A(f'v_mov_b32 v7, {s(sROLE)}')
        A(f'buffer_store_dwordx4 v[4:7], off, {s(SRDF,4)}, {s(sT)}')
    A('L_done:')
    A('s_endpgm')
    o+=rare_block(0,'L_ret0'); o+=rare_block(1,'L_ret1')
    o=[x for x in o if x is not None]
    n=hazard.check(o)
    if n: print('HAZARDS:',n);
    pre=HDR+['; @launch grid=(256,1,1) block=(256,1,1) lds=131072','.amdgcn_target "amdgcn-amd-amdhsa--gfx950"','.text',f'.globl {kname}','.p2align 8',f'.type {kname},@function']
    post=['.section .rodata,"a"','.p2align 6',f'.amdhsa_kernel {kname}',f'  .amdhsa_next_free_vgpr {NV+NA}','  .amdhsa_next_free_sgpr 80',f'  .amdhsa_accum_offset {NV}',
          '  .amdhsa_group_segment_fixed_size 0','  .amdhsa_kernarg_size 72','  .amdhsa_user_sgpr_count 2','  .amdhsa_user_sgpr_kernarg_segment_ptr 1','  .amdhsa_system_sgpr_workgroup_id_x 1','.end_amdhsa_kernel']
    body=[x if (x.endswith(':') or x.startswith('.')) else '    '+x for x in o]
    return '\n'.join(pre+body+post)+'\n'

def meta(name, vgpr, sgpr, wg):
    return f"""
.amdgpu_metadata
---
amdhsa.version: [1, 2]
amdhsa.kernels:
  - .name: {name}
    .symbol: {name}.kd
    .kernarg_segment_size: 72
    .kernarg_segment_align: 8
    .group_segment_fixed_size: 0
    .private_segment_fixed_size: 0
    .wavefront_size: 64
    .sgpr_count: {sgpr}
    .vgpr_count: {vgpr}
    .max_flat_workgroup_size: {wg}
    .args:
      - {{.name: kernargs, .size: 72, .offset: 0, .value_kind: by_value}}
...
.end_amdgpu_metadata
"""
def build(tag, **kw):
    src=gen(kname=tag,**kw)+meta(tag,NV+NA,80,256)
    open(tag+'.s','w').write(src)
    r=subprocess.run(['clang','-x','assembler','-target','amdgcn-amd-amdhsa','-mcpu=gfx950',tag+'.s','-o',tag+'.co'],capture_output=True,text=True)
    if r.returncode: print(r.stderr); sys.exit(1)
    return f'{tag}.co:{tag}:256:256:131072'
if __name__=='__main__':
    print(build('k1'))
```

```python
import re
TRANS=('v_exp_f32','v_log_f32','v_rcp_f32','v_rsq_f32','v_sqrt_f32','v_sin_f32','v_cos_f32')
def regs(tok):
    tok=tok.strip()
    tok=tok.lstrip('-')
    if tok.startswith('abs(') or tok.startswith('|'): tok=tok.replace('abs(','').replace(')','').replace('|','')
    m=re.fullmatch(r'([vas])(\d+)',tok)
    if m: return {(m.group(1),int(m.group(2)))}
    m=re.fullmatch(r'([vas])\[(\d+):(\d+)\]',tok)
    if m: return {(m.group(1),i) for i in range(int(m.group(2)),int(m.group(3))+1)}
    if tok=='vcc': return {('vcc',0)}
    if tok=='exec': return {('exec',0)}
    if tok=='m0': return {('m0',0)}
    return set()
class I:
    def __init__(s,text):
        s.text=text
        t=text.split(';')[0].strip()
        s.label=None; s.op=None; s.dst=set(); s.src=set(); s.A=s.B=s.C=set(); s.kind='other'; s.target=None; s.ws=1; s.data=set()
        if t.endswith(':'): s.label=t[:-1]; s.ws=0; return
        if not t or t.startswith('.'): s.ws=0; return
        p=t.split(None,1); s.op=p[0]; rest=p[1] if len(p)>1 else ''
        ops=[x.strip() for x in re.split(r',(?![^\[]*\])',rest)]
        mods=''
        if ops:
            q=ops[-1].split(None,1)
            if q:
                ops[-1]=q[0]; mods=q[1] if len(q)>1 else ''
        s.mods=mods
        op=s.op
        R=[regs(x) for x in ops]
        if op=='s_nop': s.ws=int(ops[0],0)+1; s.kind='salu'
        elif op.startswith('v_mfma'):
            s.kind='mfma'; s.dst=R[0]; s.A=R[1]; s.B=R[2]; s.C=R[3]; s.src=R[1]|R[2]|R[3]
            s.passes=8 if '32x32x16' in op else 4
        elif op.startswith('v_cmp'):
            s.kind='valu'; s.dst=R[0]; s.src=set().union(*R[1:])
        elif op.startswith('v_permlane'):
            s.kind='valu'; s.dst=R[0]|R[1]; s.src=R[0]|R[1]
        elif op.startswith('v_'):
            s.kind='valu'; s.dst=R[0]; s.src=set().union(*R[1:]) if len(R)>1 else set()
            if op.startswith('v_fmac') or op.startswith('v_pk_fmac'): s.src|=R[0]
            if op.startswith('v_add_co') or op.startswith('v_addc_co'): s.dst=R[0]|R[1]; s.src=set().union(*R[2:])
            if op.startswith('v_cndmask') and len(ops)==3: s.src|={('vcc',0)}
        elif op.startswith('ds_read'):
            s.kind='ds'; s.dst=R[0]; s.src=R[1]
        elif op.startswith('ds_'):
            s.kind='ds'; s.src=set().union(*R)
        elif op.startswith('buffer_') or op.startswith('global_'):
            s.kind='vmem'
            lds = ' lds' in (' '+mods) or 'load_lds' in op
            if 'load' in op and not lds:
                s.dst=R[0]; s.src=set().union(*R[1:])
            elif 'load' in op:
                s.src=set().union(*R)|{('m0',0)}; s.ldsdma=True
            elif 'store' in op:
                s.src=set().union(*R)
                if 'x4' in op or 'x3' in op: s.data=R[0] if op.startswith('buffer') else R[1]
            elif 'atomic' in op:
                s.src=set().union(*R)
                if 'sc0' in mods: s.dst=R[0]
            else: pass
        elif op.startswith('s_cbranch') or op=='s_branch':
            s.kind='br'; s.target=ops[0]
        elif op.startswith('s_'):
            s.kind='salu'
            if op.startswith(('s_cmp','s_waitcnt','s_barrier','s_sleep','s_endpgm','s_setprio','s_bitcmp')): s.src=set().union(*R) if R else set()
            else: s.dst=R[0]; s.src=set().union(*R[1:]) if len(R)>1 else set()
            if 'saveexec' in op: s.dst|={('exec',0)}
def isv(r): return r[0] in 'va'
def need(p,c):
    n=0
    if p.kind=='mfma':
        big={8:12,4:8}[p.passes]; ov={8:10,4:6}[p.passes]; war={8:7,4:3}[p.passes]
        if c.kind=='mfma':
            if p.dst&(c.A|c.B): n=max(n,big)
            if p.dst&c.C and not (p.dst==c.C and p.passes==c.passes): n=max(n,ov)
            if p.dst&c.dst and not (p.dst==c.C): n=max(n,ov)
        elif c.kind=='valu':
            if p.dst&(c.src|c.dst): n=max(n,big)
            if p.C&c.dst: n=max(n,war)
        elif c.kind in('ds','vmem'):
            if p.dst&(c.src|c.dst): n=max(n,big)
            if p.C&c.dst: n=max(n,war)
    if p.kind=='valu':
        vd={r for r in p.dst if isv(r)}; sd={r for r in p.dst if not isv(r)}
        if c.kind=='mfma' and vd&c.src: n=max(n,2)
        if c.kind=='mfma' and ('exec',0) in p.dst: n=max(n,4)
        if c.op and c.op.startswith('v_permlane') and vd&c.src: n=max(n,2)
        if c.op and c.op.startswith(('v_readfirstlane','v_readlane')) and vd&c.src: n=max(n,1)
        if p.op in TRANS and c.kind in('valu',) and c.op not in TRANS and vd&c.src: n=max(n,1)
        if p.op in TRANS and c.kind in('ds','vmem','mfma') and vd&c.src: n=max(n,1)
        if c.kind=='vmem' and sd&c.src: n=max(n,5)
        if c.kind=='valu' and sd&c.src: n=max(n,2)
        if c.kind=='valu' and 'dpp' in getattr(c,'mods','') and vd&c.src: n=max(n,2)
        if c.kind=='salu' and sd&c.src: n=max(n,1)
    if p.kind=='salu' and ('m0',0) in p.dst and getattr(c,'ldsdma',False): n=max(n,1)
    if p.kind=='vmem' and p.data and c.dst&p.data: n=max(n,2 if c.kind=='valu' else 1)
    return n
def check(lines,verbose=True):
    ins=[I(l) for l in lines]
    lab={x.label:i for i,x in enumerate(ins) if x.label}
    errs=[]
    for i,p in enumerate(ins):
        if p.kind not in('mfma','valu','salu','vmem') or p.op is None: continue
        if p.kind=='salu' and ('m0',0) not in p.dst: continue
        stack=[(i+1,0)]; seen={}
        while stack:
            j,d=stack.pop()
            if j>=len(ins) or d>=20: continue
            if seen.get(j,99)<=d: continue
            seen[j]=d
            c=ins[j]
            if c.op:
                n=need(p,c)
                if n>d: errs.append((i,j,n,d))
            if c.op=='s_endpgm': continue
            if c.kind=='br':
                if c.target in lab: stack.append((lab[c.target],d+1))
                if c.op!='s_branch': stack.append((j+1,d+1))
            else: stack.append((j+1,d+c.ws))
    for i,j,n,d in errs:
        print(f'HAZARD need {n} have {d}:\n   [{i}] {ins[i].text}\n   [{j}] {ins[j].text}')
    return len(errs)
```

```python
import gen, sys
def out(path, **kw):
    open(path,'w').write(gen.gen(**kw))
N='cdna_kernels/'+gen.NAME
out(N+'.s', nh=30, nt=True, mapping=0)
out('o_nt0.s', nh=30, nt=False, mapping=0)
out('o_nt1_m1.s', nh=30, nt=True, mapping=1)
out('o_nt1_nh32.s', nh=32, nt=True, mapping=0)
out('o_nt1_nh28.s', nh=28, nt=True, mapping=0)
```
